```python
import torch

def _softmax(x, axis=-1):
    return torch.softmax(x, dim=axis)
def _gelu(x):
    return torch.nn.functional.gelu(x, approximate="tanh")
def _silu(x):
    return torch.nn.functional.silu(x)
def _sigmoid(x):
    return torch.sigmoid(x)
def _layernorm(x, axis=-1, eps=1e-5):
    m = x.mean(dim=axis, keepdim=True)
    v = x.var(dim=axis, keepdim=True, unbiased=False)
    return (x - m) / torch.sqrt(v + eps)
def _scatter_add(tgt, idx, src, axis=0):
    return tgt.clone().index_add_(axis, idx, src)
def _segment_sum(src, seg, n):
    out = torch.zeros((n,) + src.shape[1:], dtype=src.dtype)
    return out.index_add_(0, seg, src)
def _pad(x, pw):
    flat = tuple(v for pair in reversed(pw) for v in pair)
    return torch.nn.functional.pad(x, flat)

kernel_name = 'standalone__molecular_angular_gemnet__graph'

def setup_inputs():

    _w = (lambda a: (lambda t: t.to(torch.bfloat16) if t.is_floating_point() else t)(torch.as_tensor(a)))
    N, deg, De, L = 10000, 32, 4, 1
    E = N * deg
    T = E * deg
    NR = 8
    dist = torch.rand(E).to(float)
    angle = (torch.rand(T) * torch.pi).to(float)
    centers = torch.linspace(0.0, 1.0, NR).to(float)
    ang_freq = torch.arange(1, L + 1).to(float)
    return {
        "m": _w((lambda *s: torch.randn(*s, dtype=torch.bfloat16) * 0.05)(E, De)),
        "idx_in": _w((lambda lo, hi, *s: torch.randint(lo, hi, s))(0, E, T).to(torch.int64)),
        "idx_out": _w((lambda lo, hi, *s: torch.randint(lo, hi, s))(0, E, T).to(torch.int64)),
        "dist": _w(dist),
        "angle": _w(angle),
        "centers": _w(centers),
        "ang_freq": _w(ang_freq),
        "w_rbf": _w((lambda *s: torch.randn(*s, dtype=torch.bfloat16) * 0.4)(NR, De)),
        "w_sbf": _w((lambda *s: torch.randn(*s, dtype=torch.bfloat16) * 0.4)(NR * L, De)),
        "w_down": _w((lambda *s: torch.randn(*s, dtype=torch.bfloat16) * 0.4)(De, De)),
        "w_up": _w((lambda *s: torch.randn(*s, dtype=torch.bfloat16) * 0.4)(De, De)),
    }

def reference(m, idx_in, idx_out, dist, angle, centers, ang_freq, w_rbf, w_sbf, w_down, w_up):
    E, De = m.shape[0], m.shape[1]
    NR = centers.shape[0]
    L = ang_freq.shape[0]
    rbf = torch.exp(-10.0 * (dist[:, None] - centers[None, :]) ** 2)
    cbf = torch.cos(ang_freq[None, :] * angle[:, None])
    rbf_t = rbf[idx_out]
    sbf = torch.reshape(rbf_t[:, :, None] * cbf[:, None, :], (-1, NR * L))
    x = (m[idx_in] @ w_down) * (sbf @ w_sbf)
    agg = _segment_sum(x, idx_out, E)
    return m + (agg @ w_up) * (rbf @ w_rbf)
```

```python
class Asm:
    def __init__(self):
        self.lines = []
        self.uid = 0
    def __call__(self, s=""):
        for ln in s.split("\n"):
            self.lines.append("    " + ln.strip() if ln.strip() and not ln.strip().endswith(":") else ln.strip())
    def c(self, s):
        self.lines.append("    ; " + s)
    def label(self, name):
        self.lines.append(name + ":")
    def newlabel(self, base):
        self.uid += 1
        return f"L_{base}_{self.uid}"
    def nop(self, n):
        assert 1 <= n <= 16
        self.lines.append(f"    s_nop {n-1}")
    def text(self):
        return "\n".join(self.lines) + "\n"

def v(i, n=1):
    return f"v{i}" if n == 1 else f"v[{i}:{i+n-1}]"
def s(i, n=1):
    return f"s{i}" if n == 1 else f"s[{i}:{i+n-1}]"

DPP_SCAN = ["row_shr:1 row_mask:0xf bank_mask:0xf",
            "row_shr:2 row_mask:0xf bank_mask:0xf",
            "row_shr:4 row_mask:0xf bank_mask:0xf",
            "row_shr:8 row_mask:0xf bank_mask:0xf",
            "row_bcast:15 row_mask:0xa bank_mask:0xf",
            "row_bcast:31 row_mask:0xc bank_mask:0xf"]

def scan(a, op, regs):
    a.nop(2)
    for step in DPP_SCAN:
        for r in regs:
            a(f"{op}_dpp v{r}, v{r}, v{r} {step}")
        if len(regs) < 3:
            a.nop(3 - len(regs))
```

```python
import sys
from asmlib import *

E = 320000
T = 10240000
C = 10240
NCH = T // C
EO = 10000
NJ = 32
ES = 16384
NG = 20
K = NJ * NG
RS = (C + K) * 6
OS = 1288
NQ = 4
NS = 5
WS0 = 0
def al(x, a=4096): return (x + a - 1) // a * a
REC = WS0
OFFT = al(REC + NCH * RS)
MH = al(OFFT + NCH * OS)
MHS = NG * ES * 4
MAXP = al(MH + 2 * MHS)
PART = al(MAXP + NCH * 4)
WSEND = PART + NQ * 2 * E * 8
assert WSEND <= 268435456

CFG = dict(ld_in=" nt", st_rec=" sc1", st_misc="", ld_rec="", st_part=" sc1", ld_part="", dma="")

P1_HIST = RS
P1_MISC = P1_HIST + K * 4
P1_LDS = P1_MISC + 64

def emit_header(a, launches):
    a.lines.append("; GemNet angular triplet aggregation: partition (p1) -> LDS gather/accumulate (p2) -> epilogue (p3)")
    for (k, g, b, l) in launches:
        a.lines.append(f"; @launch kernel={k} grid=({g},1,1) block=({b},1,1) lds={l}")
    a.lines.append('.amdgcn_target "amdgcn-amd-amdhsa--gfx950"')
    a.lines.append(".text")

def kernel_start(a, name):
    a.lines.append(f".globl {name}")
    a.lines.append(".p2align 8")
    a.lines.append(f".type {name},@function")
    a.lines.append(f"{name}:")

def kernel_desc(name, vgpr, sgpr):
    acc = (vgpr + 3) // 4 * 4
    return f""".amdhsa_kernel {name}
  .amdhsa_next_free_vgpr {vgpr}
  .amdhsa_next_free_sgpr {sgpr}
  .amdhsa_accum_offset {acc}
  .amdhsa_group_segment_fixed_size 0
  .amdhsa_kernarg_size 112
  .amdhsa_user_sgpr_count 2
  .amdhsa_user_sgpr_kernarg_segment_ptr 1
  .amdhsa_system_sgpr_workgroup_id_x 1
.end_amdhsa_kernel
"""

def add64(a, sreg, imm):
    a(f"s_add_u32 s{sreg}, s{sreg}, {imm}")
    a(f"s_addc_u32 s{sreg+1}, s{sreg+1}, 0")

def gen_p1(a, name):
    kernel_start(a, name)
    OUT = list(range(8, 18)); IN = list(range(18, 28)); ANG = list(range(28, 33))
    VT = 33
    vFREQ = 62; vONE = 63; vSIX = 61
    a(f"s_cmp_ge_u32 s2, {NCH}")
    a(f"s_cbranch_scc1 {name}_end")
    a("s_load_dwordx4 s[4:7], s[0:1], 0")
    a("s_load_dwordx2 s[8:9], s[0:1], 16")
    a("s_load_dwordx2 s[10:11], s[0:1], 32")
    a("s_load_dwordx2 s[12:13], s[0:1], 48")
    a("s_load_dwordx2 s[14:15], s[0:1], 72")
    a("s_load_dwordx2 s[16:17], s[0:1], 104")
    a("v_lshlrev_b32 v1, 4, v0")
    a("v_add_u32 v2, 16384, v1")
    a("v_lshlrev_b32 v3, 3, v0")
    a("v_add_u32 v4, 32768, v3")
    a("v_add_u32 v5, 8192, v3")
    a("v_lshlrev_b32 v6, 2, v0")
    a("v_add_u32 v7, 16384, v6")
    a("v_lshrrev_b32 v33, 6, v0")
    a("v_mov_b32 v63, 1")
    a("v_readfirstlane_b32 s48, v33")
    a("v_mov_b32 v61, 6")
    a(f"s_mul_i32 s18, s2, {C*4}")
    a(f"s_mul_i32 s19, s2, {C*2}")
    a("s_waitcnt lgkmcnt(0)")
    a("s_load_dword s44, s[12:13], 0")
    a("s_load_dwordx8 s[20:27], s[14:15], 0")
    add64(a, 6, "s18"); add64(a, 8, "s18"); add64(a, 10, "s19")
    a("s_cmp_lt_u32 s48, 5")
    a(f"s_cbranch_scc0 {name}_nomload")
    a(f"s_mul_i32 s50, s2, {320*8}")
    a("v_add_u32 v34, s50, v3")
    a("global_load_dwordx2 v[36:37], v34, s[4:5]")
    a.label(f"{name}_nomload")
    ld = CFG["ld_in"]
    a(f"global_load_dwordx4 v[8:11], v1, s[8:9]{ld}")
    a(f"global_load_dwordx4 v[18:21], v1, s[6:7]{ld}")
    a(f"global_load_dwordx2 v[28:29], v3, s[10:11]{ld}")
    a(f"global_load_dwordx4 v[12:15], v2, s[8:9]{ld}")
    a(f"global_load_dwordx4 v[22:25], v2, s[6:7]{ld}")
    a(f"global_load_dwordx2 v[30:31], v5, s[10:11]{ld}")
    a(f"global_load_dwordx2 v[16:17], v4, s[8:9]{ld}")
    a(f"global_load_dwordx2 v[26:27], v4, s[6:7]{ld}")
    a(f"global_load_dword v32, v7, s[10:11]{ld}")
    a("v_mov_b32 v33, 0")
    a(f"v_cmp_gt_u32 vcc, {K+16}, v0")
    a("s_and_saveexec_b64 s[52:53], vcc")
    a(f"ds_write_b32 v6, v33 offset:{P1_HIST}")
    a("s_mov_b64 exec, s[52:53]")
    a("s_mov_b32 s45, 429497")
    a("s_mov_b32 s46, -10000")
    a("s_mov_b32 s47, 80")
    a("s_waitcnt lgkmcnt(0)")
    a("s_lshl_b32 s44, s44, 16")
    a("v_mov_b32 v62, s44")
    a("v_mul_f32 v62, 0.15915494, v62")
    a("s_barrier")
    a("s_cmp_lt_u32 s48, 5")
    a(f"s_cbranch_scc0 {name}_nomjob")
    for i in range(8):
        a(f"s_lshl_b32 s{28+2*i}, s{20+i}, 16")
        a(f"s_and_b32 s{29+2*i}, s{20+i}, 0xffff0000")
    a("s_waitcnt vmcnt(9)")
    a("v_lshlrev_b32 v38, 16, v36")
    a("v_and_b32 v39, 0xffff0000, v36")
    a("v_lshlrev_b32 v40, 16, v37")
    a("v_and_b32 v41, 0xffff0000, v37")
    for k in range(4):
        a(f"v_mul_f32 v{42+k}, s{28+k}, v38")
        a(f"v_fma_f32 v{42+k}, v39, s{28+4+k}, v{42+k}")
        a(f"v_fma_f32 v{42+k}, v40, s{28+8+k}, v{42+k}")
        a(f"v_fma_f32 v{42+k}, v41, s{28+12+k}, v{42+k}")
    a("v_cvt_pk_bf16_f32 v46, v42, v43")
    a("v_cvt_pk_bf16_f32 v47, v44, v45")
    a("v_lshrrev_b32 v35, 1, v34")
    a(f"s_add_u32 s54, s16, {MH}")
    a("s_addc_u32 s55, s17, 0")
    a(f"s_add_u32 s56, s16, {MH+MHS}")
    a("s_addc_u32 s57, s17, 0")
    a(f"global_store_dword v35, v46, s[54:55]{CFG['st_misc']}")
    a(f"global_store_dword v35, v47, s[56:57]{CFG['st_misc']}")
    a("v_max_f32 v42, |v42|, |v43|")
    a("v_max_f32 v44, |v44|, |v45|")
    a("v_max_f32 v42, v42, v44")
    scan(a, "v_max_u32", [42])
    a("s_nop 0")
    a("v_readlane_b32 s58, v42, 63")
    a(f"v_mov_b32 v43, {P1_MISC+4}")
    a("s_nop 0")
    a("v_mov_b32 v44, s58")
    a("ds_max_u32 v43, v44")
    a.label(f"{name}_nomjob")
    def rec_xform(i):
        o, n = OUT[i], IN[i]
        t0, t1, t2 = VT, VT + 1, VT + 2
        a(f"v_mul_hi_u32 v{t0}, v{o}, s45")
        a(f"v_lshrrev_b32 v{t2}, 12, v{n}")
        a(f"v_mad_i32_i24 v{t1}, v{t0}, s46, v{o}")
        a(f"v_and_b32 v{t2}, -4, v{t2}")
        a(f"v_lshlrev_b32 v{n}, 2, v{n}")
        a(f"v_mad_u32_u24 v{o}, v{t0}, s47, v{t2}")
        a(f"v_add_u32 v{t1}, 1, v{t1}")
        a(f"v_and_b32 v{n}, 0xffff, v{n}")
        a(f"ds_add_u32 v{o}, v63 offset:{P1_HIST}")
        a(f"v_lshl_or_b32 v{n}, v{t1}, 16, v{n}")
    def cos_xform(p):
        r = ANG[p]; t0, t1 = VT + 4, VT + 5
        a(f"v_lshlrev_b32 v{t0}, 16, v{r}")
        a(f"v_and_b32 v{t1}, 0xffff0000, v{r}")
        a(f"v_mul_f32 v{t0}, v62, v{t0}")
        a(f"v_mul_f32 v{t1}, v62, v{t1}")
        a(f"v_fract_f32 v{t0}, v{t0}")
        a(f"v_fract_f32 v{t1}, v{t1}")
        a(f"v_cos_f32 v{t0}, v{t0}")
        a(f"v_cos_f32 v{t1}, v{t1}")
        a("s_nop 0")
        a(f"v_cvt_pk_bf16_f32 v{r}, v{t0}, v{t1}")
    groups = [(range(0, 4), range(0, 2), 6), (range(4, 8), range(2, 4), 3), (range(8, 10), range(4, 5), 0)]
    for recs, prs, wc in groups:
        a(f"s_waitcnt vmcnt({wc})")
        for i in recs: rec_xform(i)
        for p in prs: cos_xform(p)
    a("s_waitcnt lgkmcnt(0)")
    a("s_barrier")
    a("s_cmp_eq_u32 s48, 0")
    a(f"s_cbranch_scc0 {name}_noscan")
    CN = list(range(34, 44))
    OF = list(range(44, 54))
    a("v_mul_u32_u24 v33, 40, v0")
    for i in range(5):
        a(f"ds_read_b64 v[{34+2*i}:{35+2*i}], v33 offset:{P1_HIST + 8*i}")
    a(f"v_mov_b32 v54, {P1_MISC+4}")
    a("ds_read_b32 v55, v54")
    a("s_waitcnt lgkmcnt(0)")
    a(f"v_mov_b32 v{OF[0]}, 0")
    for i in range(10):
        a(f"v_add_u32 v57, 1, v{CN[i]}")
        a("v_and_b32 v57, -2, v57")
        dst = OF[i+1] if i < 9 else 56
        a(f"v_add_u32 v{dst}, v{OF[i]}, v57")
    a("v_mov_b32 v58, v56")
    scan(a, "v_add_u32", [56])
    a("v_sub_u32 v58, v56, v58")
    a("v_readlane_b32 s59, v56, 63")
    for i in range(10):
        a(f"v_add_u32 v{OF[i]}, v{OF[i]}, v58")
    a("v_mul_u32_u24 v59, 10, v0")
    a("v_mov_b32 v60, 0")
    for i in range(10):
        a(f"v_and_b32 v57, 1, v{CN[i]}")
        a("v_cmp_eq_u32 vcc, 1, v57")
        a(f"v_add_u32 v57, v{OF[i]}, v{CN[i]}")
        a("v_mul_u32_u24 v57, 6, v57")
        a(f"v_add_u32 v33, {i+1}, v59")
        a("v_lshlrev_b32 v33, 16, v33")
        a("v_add_u32 v57, -2, v57")
        a("s_and_saveexec_b64 s[52:53], vcc")
        a("ds_write_b32 v57, v33")
        a("ds_write_b16 v57, v60 offset:6")
        a("s_mov_b64 exec, s[52:53]")
    for i in range(10):
        a(f"v_mul_u32_u24 v{CN[i]}, 6, v{OF[i]}")
    a("v_mul_u32_u24 v33, 40, v0")
    for i in range(5):
        a(f"ds_write_b64 v33, v[{34+2*i}:{35+2*i}] offset:{P1_HIST + 8*i}")
    for i in range(10):
        a(f"v_lshrrev_b32 v{OF[i]}, 1, v{OF[i]}")
    for i in range(5):
        a(f"v_lshl_or_b32 v{34+i}, v{OF[2*i+1]}, 16, v{OF[2*i]}")
    a(f"s_mul_i32 s50, s2, {OS}")
    a(f"s_add_u32 s54, s16, {OFFT}")
    a("s_addc_u32 s55, s17, 0")
    add64(a, 54, "s50")
    a("v_mul_u32_u24 v33, 20, v0")
    a(f"global_store_dwordx4 v33, v[34:37], s[54:55]{CFG['st_misc']}")
    a(f"global_store_dword v33, v38, s[54:55] offset:16{CFG['st_misc']}")
    a("s_lshr_b32 s60, s59, 1")
    a("s_mul_i32 s61, s59, 6")
    a("v_mov_b32 v40, s60")
    a("v_mov_b32 v41, s61")
    a(f"v_mov_b32 v42, {P1_MISC}")
    a(f"v_mov_b32 v43, {K*2}")
    a(f"s_lshl_b32 s62, s2, 2")
    a(f"s_add_u32 s56, s16, {MAXP}")
    a("s_addc_u32 s57, s17, 0")
    a("v_mov_b32 v44, s62")
    a("v_cmp_eq_u32 vcc, 0, v0")
    a("s_and_saveexec_b64 s[52:53], vcc")
    a(f"global_store_short v43, v40, s[54:55]{CFG['st_misc']}")
    a(f"global_store_dword v44, v55, s[56:57]{CFG['st_misc']}")
    a("ds_write_b32 v42, v41")
    a("s_mov_b64 exec, s[52:53]")
    a("s_waitcnt lgkmcnt(0)")
    a.label(f"{name}_noscan")
    a("s_barrier")
    B = list(range(34, 44))
    for i in range(10):
        a(f"ds_add_rtn_u32 v{B[i]}, v{OUT[i]}, v61 offset:{P1_HIST}")
    a(f"v_mov_b32 v33, {P1_MISC}")
    a("ds_read_b32 v60, v33")
    for i in range(10):
        a(f"s_waitcnt lgkmcnt({min(15, 10 + i)})")
        a(f"v_and_b32 v44, 2, v{B[i]}")
        a(f"v_sub_u32 v{B[i]}, v{B[i]}, v44")
        a(f"v_sub_u32 v45, v{B[i]}, v44")
        a(f"ds_write_b32 v{B[i]}, v{IN[i]}")
        if i % 2 == 0:
            a(f"ds_write_b16 v45, v{ANG[i//2]} offset:8")
        else:
            a(f"ds_write_b16_d16_hi v45, v{ANG[i//2]} offset:8")
    a("s_waitcnt lgkmcnt(0)")
    a("v_readfirstlane_b32 s59, v60")
    a("s_barrier")
    a(f"s_mul_i32 s50, s2, {RS}")
    a(f"s_add_u32 s54, s16, {REC}")
    a("s_addc_u32 s55, s17, 0")
    add64(a, 54, "s50")
    a("s_add_u32 s59, s59, 15")
    a("s_lshr_b32 s59, s59, 4")
    a("v_add_u32 v33, 3072, v0")
    a("v_add_u32 v34, 32768, v1")
    a("v_add_u32 v35, 49152, v1")
    a("v_cmp_gt_u32 vcc, s59, v33")
    a("s_and_saveexec_b64 s[52:53], vcc")
    a("ds_read_b128 v[20:23], v1 offset:49152")
    a("s_mov_b64 exec, s[52:53]")
    a("ds_read_b128 v[8:11], v1")
    a("ds_read_b128 v[12:15], v1 offset:16384")
    a("ds_read_b128 v[16:19], v1 offset:32768")
    st = CFG["st_rec"]
    a("s_waitcnt lgkmcnt(2)")
    a(f"global_store_dwordx4 v1, v[8:11], s[54:55]{st}")
    a("s_waitcnt lgkmcnt(1)")
    a(f"global_store_dwordx4 v2, v[12:15], s[54:55]{st}")
    a("s_waitcnt lgkmcnt(0)")
    a(f"global_store_dwordx4 v34, v[16:19], s[54:55]{st}")
    a("s_and_saveexec_b64 s[52:53], vcc")
    a(f"s_cbranch_execz {name}_end")
    a(f"global_store_dwordx4 v35, v[20:23], s[54:55]{st}")
    a.label(f"{name}_end")
    a("s_endpgm")
    return kernel_desc(name, 64, 72)


P2_ACC = 65536
P2_MISC = P2_ACC + EO * 8
P2_LDS = P2_MISC + 128
NW = 10
WIN = 63

def gen_p2(a, name):
    kernel_start(a, name)
    vLANE12, vCRS, vW0, vW1, vW2, vP4, vD, vF12, vF12B, vSCALE, vFLAG, vDMA = 1, 2, 3, 4, 5, 6, 7, 8, 9, 10, 11, 12
    vTMP = 13
    Tt = list(range(16, 26))
    X = list(range(26, 38))
    SETA, SETB = 40, 80
    sQ, sJ, sH, sW = 6, 7, 8, 9
    sREC = 10
    sSL = 12
    sRED = 14
    sNK = 16
    sM63 = 20
    sNWC, sLASTC, sMLC = 22, 23, 24
    sNWN, sLASTN, sMLN = 26, 27, 28
    sREM, sCAR, sPH = 30, 31, 32
    sINV = 33
    sT = 34
    sRL = 40
    sSV = 50
    sPC = 52
    a(f"s_cmp_ge_u32 s2, 256")
    a(f"s_cbranch_scc1 {name}_end")
    a("s_load_dwordx2 s[4:5], s[0:1], 104")
    a("s_and_b32 s34, s2, 7")
    a("s_lshr_b32 s35, s2, 3")
    a(f"s_lshr_b32 s{sQ}, s34, 1")
    a("s_and_b32 s34, s34, 1")
    a("s_lshl_b32 s34, s34, 4")
    a(f"s_lshr_b32 s{sJ}, s35, 1")
    a(f"s_add_u32 s{sJ}, s{sJ}, s34")
    a(f"s_and_b32 s{sH}, s35, 1")
    a("v_lshrrev_b32 v13, 6, v0")
    a("v_and_b32 v14, 63, v0")
    a(f"v_readfirstlane_b32 s{sW}, v13")
    a(f"v_mul_u32_u24 v{vLANE12}, 12, v14")
    a(f"v_lshlrev_b32 v{vDMA}, 4, v14")
    a(f"s_mov_b32 s34, {RS}")
    a(f"v_mul_lo_u32 v{vCRS}, v0, s34")
    a(f"s_mov_b32 s{sNK}, 0xB4C00000")
    a(f"s_mov_b32 s{sNK+1}, 0xB4BFFFFF")
    a(f"s_mov_b32 s{sM63}, -1")
    a(f"s_mov_b32 s{sM63+1}, 0x7fffffff")
    a(f"s_mov_b32 s{sRED}, 0")
    a("s_waitcnt lgkmcnt(0)")
    a(f"s_add_u32 s{sREC}, s4, {REC}")
    a(f"s_addc_u32 s{sREC+1}, s5, 0")
    a.label(f"{name}_restart")
    a(f"s_mul_i32 s34, s{sH}, {MHS}")
    a(f"s_mul_i32 s35, s{sQ}, {NS*ES*4}")
    a("s_add_u32 s34, s34, s35")
    a(f"s_lshl_b32 s35, s{sW}, 12")
    a("s_add_u32 s34, s34, s35")
    a(f"s_add_u32 s34, s34, {MH}")
    a(f"s_add_u32 s{sSL}, s4, s34")
    a(f"s_addc_u32 s{sSL+1}, s5, 0")
    a(f"s_mov_b32 m0, s35")
    a(f"s_mul_i32 s36, s{sJ}, 20")
    a(f"s_mul_i32 s37, s{sQ}, 5")
    a("s_add_u32 s36, s36, s37")
    a("s_and_b32 s38, s36, 1")
    a("s_lshl_b32 s38, s38, 4")
    a("s_lshl_b32 s36, s36, 1")
    a("s_and_b32 s36, s36, -4")
    a(f"s_add_u32 s36, s36, {OFFT}")
    a("s_add_u32 s40, s4, s36")
    a("s_addc_u32 s41, s5, 0")
    a(f"s_add_u32 s42, s4, {MAXP}")
    a("s_addc_u32 s43, s5, 0")
    a(f"s_mov_b32 s34, {OS}")
    a("v_mul_lo_u32 v13, v0, s34")
    a("v_lshlrev_b32 v14, 2, v0")
    for r in (16, 17, 18, 19, 20):
        a(f"v_mov_b32 v{r}, 0")
    for k in range(4):
        a(f"global_load_lds_dwordx4 v{vDMA}, s[{sSL}:{sSL+1}] offset:{k*1024}{CFG['dma']}")
    a(f"v_cmp_gt_u32 vcc, {NCH}, v0")
    a(f"s_and_saveexec_b64 s[{sSV}:{sSV+1}], vcc")
    a("global_load_dwordx4 v[16:19], v13, s[40:41]")
    a("global_load_dword v20, v14, s[42:43]")
    a(f"s_mov_b64 exec, s[{sSV}:{sSV+1}]")
    add64(a, sSL, ES*4)
    a("v_mov_b32 v24, 0x40000000")
    a("v_mov_b32 v25, v24"); a("v_mov_b32 v26, v24"); a("v_mov_b32 v27, v24")
    a("v_lshlrev_b32 v13, 4, v0")
    a(f"v_add_u32 v13, {P2_ACC}, v13")
    for k in range(4):
        a(f"ds_write_b128 v13, v[24:27] offset:{k*16384}")
    a(f"v_add_u32 v13, {4*16384}, v13")
    a(f"v_cmp_gt_u32 vcc, {EO//2 - 4096}, v0")
    a(f"s_and_saveexec_b64 s[{sSV}:{sSV+1}], vcc")
    a("ds_write_b128 v13, v[24:27]")
    a(f"s_mov_b64 exec, s[{sSV}:{sSV+1}]")
    a(f"v_mov_b32 v13, {P2_MISC+64}")
    a("v_mov_b32 v14, 0")
    a("ds_write_b32 v13, v14")
    for r in X: a(f"v_mov_b32 v{r}, 0")
    a(f"v_mov_b32 v{vFLAG}, 0")
    a("s_waitcnt vmcnt(0)")
    a(f"v_alignbit_b32 v{vW0}, v17, v16, s38")
    a(f"v_alignbit_b32 v{vW1}, v18, v17, s38")
    a(f"v_alignbit_b32 v{vW2}, v19, v18, s38")
    scan(a, "v_max_u32", [20])
    a("v_readlane_b32 s34, v20, 63")
    a(f"s_lshl_b32 s35, s{sW}, 2")
    a(f"s_add_u32 s35, s35, {P2_MISC}")
    a("v_mov_b32 v13, s35")
    a("v_mov_b32 v14, s34")
    a("ds_write_b32 v13, v14")
    a("s_waitcnt lgkmcnt(0)")
    a("s_barrier")
    a("v_and_b32 v13, 15, v0")
    a("v_lshlrev_b32 v13, 2, v13")
    a(f"v_add_u32 v13, {P2_MISC}, v13")
    a("ds_read_b32 v14, v13")
    a("s_waitcnt lgkmcnt(0)")
    scan(a, "v_max_u32", [14])
    a("v_readlane_b32 s34, v14, 63")
    a("s_nop 3")
    a("s_lshr_b32 s34, s34, 23")
    a(f"s_lshl_b32 s35, s{sRED}, 2")
    a("s_add_u32 s34, s34, s35")
    a("s_sub_i32 s34, 275, s34")
    a("s_min_i32 s34, s34, 254")
    a("s_max_i32 s34, s34, 1")
    a("s_sub_i32 s35, 254, s34")
    a("s_lshl_b32 s34, s34, 23")
    a(f"s_lshl_b32 s{sINV}, s35, 23")
    a(f"v_mov_b32 v{vSCALE}, s34")

    def phase_setup():
        a(f"v_and_b32 v13, 0xffff, v{vW0}")
        a(f"v_lshrrev_b32 v14, 16, v{vW0}")
        a(f"v_alignbit_b32 v{vW0}, v{vW1}, v{vW0}, 16")
        a(f"v_alignbit_b32 v{vW1}, v{vW2}, v{vW1}, 16")
        a(f"v_lshrrev_b32 v{vW2}, 16, v{vW2}")
        a("v_sub_u32 v14, v14, v13")
        a("v_mov_b32 v15, v14")
        scan(a, "v_add_u32", [15])
        a(f"v_readlane_b32 s{sREM}, v15, 63")
        a("v_sub_u32 v15, v15, v14")
        a("v_add_u32 v14, -1, v14")
        a("v_and_b32 v14, 0x40000000, v14")
        a(f"v_lshl_or_b32 v{vP4}, v15, 2, v14")
        a("v_sub_u32 v13, v13, v15")
        a(f"v_mad_i32_i24 v{vD}, v13, 12, v{vCRS}")
        a(f"v_mov_b32 v{vF12}, v{vLANE12}")
        a(f"s_mov_b32 s{sCAR}, 0")

    def flatten(dst):
        lab = a.newlabel("fl")
        a(f"s_min_u32 s34, s{sREM}, {NW*WIN}")
        a(f"s_sub_u32 s{sREM}, s{sREM}, s34")
        a(f"s_cmp_eq_u32 s{sREM}, 0")
        a(f"s_cselect_b32 s{sLASTN}, 1, 0")
        a(f"s_add_u32 s35, s34, {WIN-1}")
        a("s_mul_hi_u32 s35, s35, 68174085")
        a(f"s_mov_b32 s{sNWN}, s35")
        a("s_cmp_eq_u32 s35, 0")
        a(f"s_cbranch_scc1 {lab}_done")
        a("s_sub_u32 s36, s35, 1")
        a(f"s_mul_i32 s36, s36, {WIN}")
        a("s_sub_u32 s36, s34, s36")
        a(f"s_bfm_b64 s[{sMLN}:{sMLN+1}], s36, 0")
        for k in range(NW):
            a(f"v_min_u32 v{Tt[k]}, 252, v{vP4}")
            a(f"v_add_u32 v{vP4}, -252, v{vP4}")
            a(f"ds_permute_b32 v{Tt[k]}, v{Tt[k]}, v{vD}")
        a(f"v_add_u32 v{vF12B}, {12*WIN*5}, v{vF12}")
        a("s_waitcnt lgkmcnt(0)")
        scan(a, "v_max_u32", Tt)
        for k in range(NW):
            a(f"v_readlane_b32 s{sRL+k}, v{Tt[k]}, 62")
        a("s_nop 1")
        prev = sCAR
        for k in range(NW):
            a(f"v_max_u32 v{Tt[k]}, s{prev}, v{Tt[k]}")
            a(f"s_max_u32 s{sRL+k}, s{sRL+k}, s{prev}")
            prev = sRL + k
        a(f"s_mov_b32 s{sCAR}, s{prev}")
        for k in range(NW):
            base = vF12 if k < 5 else vF12B
            a(f"v_add_u32 v{Tt[k]}, v{base}, v{Tt[k]}")
        a(f"v_add_u32 v{vF12}, {12*WIN*NW}, v{vF12}")
        for k in range(NW):
            a(f"s_cmp_le_u32 s{sNWN}, {k}")
            a(f"s_cbranch_scc1 {lab}_ldone")
            a(f"s_cmp_eq_u32 s{sNWN}, {k+1}")
            a(f"s_cselect_b64 exec, s[{sMLN}:{sMLN+1}], s[{sM63}:{sM63+1}]")
            a(f"global_load_dwordx3 v[{dst+4*k}:{dst+4*k+2}], v{Tt[k]}, s[{sREC}:{sREC+1}] offset:{12*WIN*(k%5)}{CFG['ld_rec']}")
        a.label(f"{lab}_ldone")
        a("s_mov_b64 exec, -1")
        a.label(f"{lab}_done")

    def body(cur, nxt, nextlab, tag):
        a(f"s_mov_b32 s{sNWC}, s{sNWN}")
        a(f"s_mov_b32 s{sLASTC}, s{sLASTN}")
        a(f"s_mov_b64 s[{sMLC}:{sMLC+1}], s[{sMLN}:{sMLN+1}]")
        a(f"s_mov_b32 s{sPC}, s{sPH}")
        for k in range(NW):
            a(f"s_cmp_le_u32 s{sNWC}, {k}")
            a(f"s_cbranch_scc1 {tag}_gdone")
            a(f"s_cmp_eq_u32 s{sNWC}, {k+1}")
            a(f"s_cselect_b64 exec, s[{sMLC}:{sMLC+1}], s[{sM63}:{sM63+1}]")
            a(f"v_and_b32 v13, 0xffff, v{cur+4*k}")
            a(f"v_and_b32 v14, 0xffff, v{cur+4*k+1}")
            a(f"ds_read_b32 v{cur+4*k+3}, v13")
            a(f"ds_read_b32 v{nxt+4*k+3}, v14")
        a.label(f"{tag}_gdone")
        a("s_mov_b64 exec, -1")
        a("s_waitcnt lgkmcnt(0)")
        a(f"s_cmp_eq_u32 s{sLASTC}, 0")
        a(f"s_cbranch_scc1 {tag}_samephase")
        a("s_barrier")
        a(f"s_add_u32 s{sPH}, s{sPH}, 1")
        a(f"s_cmp_ge_u32 s{sPH}, {NS}")
        a(f"s_cbranch_scc1 {tag}_nonext")
        for k in range(4):
            a(f"global_load_lds_dwordx4 v{vDMA}, s[{sSL}:{sSL+1}] offset:{k*1024}{CFG['dma']}")
        add64(a, sSL, ES*4)
        phase_setup()
        a.label(f"{tag}_samephase")
        flatten(nxt)
        a(f"s_branch {tag}_x")
        a.label(f"{tag}_nonext")
        a(f"s_mov_b32 s{sNWN}, 0")
        a(f"s_mov_b32 s{sLASTN}, 1")
        a.label(f"{tag}_x")
        for k in range(NW):
            a(f"s_cmp_le_u32 s{sNWC}, {k}")
            a(f"s_cbranch_scc1 {tag}_xdone")
            xa, xb = X[(4*k) % 12], X[(4*k+2) % 12]
            if k >= 3:
                a("s_waitcnt lgkmcnt(4)")
                a(f"v_or3_b32 v{vFLAG}, v{vFLAG}, v{xa}, v{xa+1}")
                a(f"v_or3_b32 v{vFLAG}, v{vFLAG}, v{xb}, v{xb+1}")
            a(f"s_cmp_eq_u32 s{sNWC}, {k+1}")
            a(f"s_cselect_b64 exec, s[{sMLC}:{sMLC+1}], s[{sM63}:{sM63+1}]")
            R0, R1, Cc, G0, G1 = cur+4*k, cur+4*k+1, cur+4*k+2, cur+4*k+3, nxt+4*k+3
            t0, t1, t2, t3 = Tt[0], Tt[1], Tt[2], Tt[3]
            a(f"v_lshlrev_b32 v{t0}, 16, v{Cc}")
            a(f"v_and_b32 v{t1}, 0xffff0000, v{Cc}")
            a(f"v_lshlrev_b32 v{t2}, 16, v{G0}")
            a(f"v_and_b32 v{t3}, 0xffff0000, v{G0}")
            a(f"v_mul_f32 v{t0}, v{vSCALE}, v{t0}")
            a(f"v_mul_f32 v{t1}, v{vSCALE}, v{t1}")
            a(f"v_lshrrev_b32 v{R0}, 13, v{R0}")
            a(f"v_fmaak_f32 v{xa}, v{t2}, v{t0}, 0x4b400000")
            a(f"v_fmaak_f32 v{xa+1}, v{t3}, v{t0}, 0x4b400000")
            a(f"v_and_b32 v{R0}, 0x1fff8, v{R0}")
            a(f"v_lshlrev_b32 v{t2}, 16, v{G1}")
            a(f"v_lshl_add_u64 v[{xa}:{xa+1}], v[{xa}:{xa+1}], 0, s[{sNK}:{sNK+1}]")
            a(f"v_and_b32 v{t3}, 0xffff0000, v{G1}")
            a(f"ds_add_rtn_u64 v[{xa}:{xa+1}], v{R0}, v[{xa}:{xa+1}] offset:65528")
            a(f"v_lshrrev_b32 v{R1}, 13, v{R1}")
            a(f"v_fmaak_f32 v{xb}, v{t2}, v{t1}, 0x4b400000")
            a(f"v_fmaak_f32 v{xb+1}, v{t3}, v{t1}, 0x4b400000")
            a(f"v_and_b32 v{R1}, 0x1fff8, v{R1}")
            a(f"v_lshl_add_u64 v[{xb}:{xb+1}], v[{xb}:{xb+1}], 0, s[{sNK}:{sNK+1}]")
            a(f"ds_add_rtn_u64 v[{xb}:{xb+1}], v{R1}, v[{xb}:{xb+1}] offset:65528")
            if k == NW - 1:
                pass
        a.label(f"{tag}_xdone")
        a("s_mov_b64 exec, -1")
        a("s_waitcnt vmcnt(0) lgkmcnt(0)")
        for i in range(0, 12, 2):
            a(f"v_or3_b32 v{vFLAG}, v{vFLAG}, v{X[i]}, v{X[i+1]}")
        a(f"s_cmp_eq_u32 s{sLASTC}, 0")
        a(f"s_cbranch_scc1 {nextlab}")
        a("s_barrier")
        a(f"s_cmp_ge_u32 s{sPH}, {NS}")
        a(f"s_cbranch_scc1 {name}_out")

    a(f"s_mov_b32 s{sPH}, 0")
    phase_setup()
    flatten(SETA)
    a("s_waitcnt vmcnt(0)")
    a.label(f"{name}_bodyA")
    body(SETA, SETB, f"{name}_bodyB", f"{name}_A")
    a.label(f"{name}_bodyB")
    body(SETB, SETA, f"{name}_bodyA", f"{name}_B")
    a(f"s_branch {name}_bodyA")
    a.label(f"{name}_out")
    O = 40
    for r in range(O+16, O+20): a(f"v_mov_b32 v{r}, 0")
    a("v_lshlrev_b32 v13, 4, v0")
    a(f"v_add_u32 v13, {P2_ACC}, v13")
    a(f"v_add_u32 v14, {4*16384}, v13")
    a(f"v_cmp_gt_u32 vcc, {EO//2 - 4096}, v0")
    a(f"s_and_saveexec_b64 s[{sSV}:{sSV+1}], vcc")
    a(f"ds_read_b128 v[{O+16}:{O+19}], v14")
    a(f"s_mov_b64 exec, s[{sSV}:{sSV+1}]")
    for k in range(4):
        a(f"ds_read_b128 v[{O+4*k}:{O+4*k+3}], v13 offset:{k*16384}")
    a("s_waitcnt lgkmcnt(0)")
    for r in range(O, O+20, 2):
        a(f"v_or3_b32 v{vFLAG}, v{vFLAG}, v{r}, v{r+1}")
    a(f"v_cmp_gt_i32 vcc, 0, v{vFLAG}")
    a(f"v_mov_b32 v13, {P2_MISC+64}")
    a("v_mov_b32 v14, 1")
    a("s_cmp_eq_u64 vcc, 0")
    a(f"s_cbranch_scc1 {name}_noflag")
    a("ds_write_b32 v13, v14")
    a.label(f"{name}_noflag")
    a("s_waitcnt lgkmcnt(0)")
    a("s_barrier")
    a("ds_read_b32 v14, v13")
    a("s_waitcnt lgkmcnt(0)")
    a("v_readfirstlane_b32 s34, v14")
    a("s_nop 3")
    a("s_cmp_eq_u32 s34, 0")
    a(f"s_cbranch_scc1 {name}_store")
    a(f"s_add_u32 s{sRED}, s{sRED}, 1")
    a(f"s_cmp_ge_u32 s{sRED}, 12")
    a(f"s_cbranch_scc1 {name}_store")
    a("s_barrier")
    a(f"s_branch {name}_restart")
    a.label(f"{name}_store")
    a(f"s_lshl_b32 s34, s{sQ}, 1")
    a(f"s_add_u32 s34, s34, s{sH}")
    a(f"s_mul_i32 s34, s34, {E*8}")
    a(f"s_mul_i32 s35, s{sJ}, {EO*8}")
    a("s_add_u32 s34, s34, s35")
    a(f"s_add_u32 s34, s34, {PART}")
    a("s_add_u32 s40, s4, s34")
    a("s_addc_u32 s41, s5, 0")
    a(f"v_mov_b32 v15, s{sINV}")
    for r in range(O, O+20):
        a(f"v_add_u32 v{r}, 0xc0000000, v{r}")
    for r in range(O, O+20):
        a(f"v_cvt_f32_i32 v{r}, v{r}")
    for r in range(O, O+20):
        a(f"v_mul_f32 v{r}, v15, v{r}")
    a("v_lshlrev_b32 v13, 4, v0")
    for k in range(4):
        if k > 0: a(f"v_add_u32 v13, 16384, v13")
        a(f"global_store_dwordx4 v13, v[{O+4*k}:{O+4*k+3}], s[40:41]{CFG['st_part']}")
    a(f"v_add_u32 v13, 16384, v13")
    a(f"v_cmp_gt_u32 vcc, {EO//2 - 4096}, v0")
    a(f"s_and_saveexec_b64 s[{sSV}:{sSV+1}], vcc")
    a(f"s_cbranch_execz {name}_end")
    a(f"global_store_dwordx4 v13, v[{O+16}:{O+19}], s[40:41]{CFG['st_part']}")
    a.label(f"{name}_end")
    a("s_endpgm")
    return kernel_desc(name, 120, 64)

def gen_p3(a, name):
    kernel_start(a, name)
    NB = E // 2 // 256
    a(f"s_cmp_ge_u32 s2, {NB}")
    a(f"s_cbranch_scc1 {name}_end")
    a("s_load_dwordx2 s[4:5], s[0:1], 0")
    a("s_load_dwordx2 s[6:7], s[0:1], 24")
    a("s_load_dwordx2 s[8:9], s[0:1], 40")
    a("s_load_dwordx4 s[12:15], s[0:1], 56")
    a("s_load_dwordx4 s[16:19], s[0:1], 80")
    a("s_load_dwordx2 s[10:11], s[0:1], 104")
    a("s_lshl_b32 s3, s2, 8")
    a("v_add_u32 v0, s3, v0")
    a("v_lshlrev_b32 v1, 4, v0")
    a("v_lshlrev_b32 v2, 2, v0")
    a("s_waitcnt lgkmcnt(0)")
    a("s_load_dwordx4 s[20:23], s[8:9], 0")
    a("s_load_dwordx16 s[24:39], s[12:13], 0")
    a("s_load_dwordx16 s[40:55], s[14:15], 0")
    a("s_load_dwordx8 s[56:63], s[16:17], 0")
    a(f"s_add_u32 s10, s10, {PART}")
    a("s_addc_u32 s11, s11, 0")
    for i in range(8):
        a(f"global_load_dwordx4 v[{8+4*i}:{11+4*i}], v1, s[10:11]{CFG['ld_part']}")
        if i < 7: add64(a, 10, E*8)
    a("global_load_dwordx4 v[40:43], v1, s[4:5]")
    a("global_load_dword v3, v2, s[6:7]")
    a("s_waitcnt lgkmcnt(0)")
    for i in range(4):
        a(f"s_lshl_b32 s{64+2*i}, s{20+i}, 16")
        a(f"s_and_b32 s{65+2*i}, s{20+i}, 0xffff0000")
    def packw(raw, dst):
        for p in range(4):
            r0, r1 = raw + 4*p, raw + 4*p + 2
            a(f"s_pack_ll_b32_b16 s{dst+4*p+0}, s{r0}, s{r1}")
            a(f"s_pack_hh_b32_b16 s{dst+4*p+1}, s{r0}, s{r1}")
            a(f"s_pack_ll_b32_b16 s{dst+4*p+2}, s{r0+1}, s{r1+1}")
            a(f"s_pack_hh_b32_b16 s{dst+4*p+3}, s{r0+1}, s{r1+1}")
    packw(24, 72)
    packw(40, 24)
    for i in range(8):
        a(f"s_lshl_b32 s{40+2*i}, s{56+i}, 16")
        a(f"s_and_b32 s{41+2*i}, s{56+i}, 0xffff0000")
    a("s_mov_b32 s88, 0xc1200000")
    a("s_mov_b32 s89, 0x3fb8aa3b")
    a("s_waitcnt vmcnt(0)")
    for h in range(2):
        for c in range(4):
            d = 8 + 4*h + c
            a(f"v_add_f32 v{d}, v{d}, v{d+8}")
            a(f"v_add_f32 v{d+16}, v{d+16}, v{d+24}")
        for c in range(4):
            d = 8 + 4*h + c
            a(f"v_add_f32 v{d}, v{d}, v{d+16}")
    S = {0: [8, 9, 12, 13], 1: [10, 11, 14, 15]}
    def rnd_pair(x, y, t):
        a(f"v_cvt_pk_bf16_f32 v{t}, v{x}, v{y}")
        a(f"v_lshlrev_b32 v{x}, 16, v{t}")
        a(f"v_and_b32 v{y}, 0xffff0000, v{t}")
    for e in range(2):
        D = 16; R = list(range(17, 25)); TP = 25; RP = list(range(26, 30)); G = list(range(30, 34)); H = list(range(34, 38))
        if e == 0: a(f"v_lshlrev_b32 v{D}, 16, v3")
        else: a(f"v_and_b32 v{D}, 0xffff0000, v3")
        for r in range(8):
            a(f"v_subrev_f32 v{R[r]}, s{64+r}, v{D}")
        for p in range(4): rnd_pair(R[2*p], R[2*p+1], TP)
        for r in range(8):
            a(f"v_mul_f32 v{R[r]}, v{R[r]}, v{R[r]}")
        for p in range(4): rnd_pair(R[2*p], R[2*p+1], TP)
        for r in range(8):
            a(f"v_mul_f32 v{R[r]}, s88, v{R[r]}")
        for p in range(4): rnd_pair(R[2*p], R[2*p+1], TP)
        for r in range(8):
            a(f"v_mul_f32 v{R[r]}, s89, v{R[r]}")
        for r in range(8):
            a(f"v_exp_f32 v{R[r]}, v{R[r]}")
        a("s_nop 0")
        for p in range(4):
            a(f"v_cvt_pk_bf16_f32 v{RP[p]}, v{R[2*p]}, v{R[2*p+1]}")
        for k in range(4):
            a(f"v_mov_b32 v{G[k]}, 0")
            a(f"v_mov_b32 v{H[k]}, 0")
        for p in range(4):
            for k in range(4):
                a(f"v_dot2_f32_bf16 v{G[k]}, v{RP[p]}, s{24+4*p+k}, v{G[k]}")
                a(f"v_dot2_f32_bf16 v{H[k]}, v{RP[p]}, s{72+4*p+k}, v{H[k]}")
        a("s_nop 2")
        for k in range(4):
            a(f"v_mul_f32 v{G[k]}, v{G[k]}, v{S[e][k]}")
        rnd_pair(G[0], G[1], TP); rnd_pair(G[2], G[3], TP)
        rnd_pair(H[0], H[1], TP); rnd_pair(H[2], H[3], TP)
        U = R[0:4]
        for c in range(4):
            a(f"v_mul_f32 v{U[c]}, s{40+c}, v{G[0]}")
            for k in range(1, 4):
                a(f"v_fma_f32 v{U[c]}, v{G[k]}, s{40+4*k+c}, v{U[c]}")
        rnd_pair(U[0], U[1], TP); rnd_pair(U[2], U[3], TP)
        for c in range(4):
            a(f"v_mul_f32 v{U[c]}, v{U[c]}, v{H[c]}")
        rnd_pair(U[0], U[1], TP); rnd_pair(U[2], U[3], TP)
        m0, m1 = 40 + 2*e, 41 + 2*e
        M = R[4:8]
        a(f"v_lshlrev_b32 v{M[0]}, 16, v{m0}")
        a(f"v_and_b32 v{M[1]}, 0xffff0000, v{m0}")
        a(f"v_lshlrev_b32 v{M[2]}, 16, v{m1}")
        a(f"v_and_b32 v{M[3]}, 0xffff0000, v{m1}")
        for c in range(4):
            a(f"v_add_f32 v{U[c]}, v{U[c]}, v{M[c]}")
        a(f"v_cvt_pk_bf16_f32 v{44+2*e}, v{U[0]}, v{U[1]}")
        a(f"v_cvt_pk_bf16_f32 v{45+2*e}, v{U[2]}, v{U[3]}")
    a("global_store_dwordx4 v1, v[44:47], s[18:19]")
    a.label(f"{name}_end")
    a("s_endpgm")
    return kernel_desc(name, 48, 96)

def build(path):
    a = Asm()
    n1, n2, n3 = "gem_part_kernel", "gem_acc_kernel", "gem_fin_kernel"
    launches = [(n1, NCH, 1024, P1_LDS), (n2, 256, 1024, P2_LDS), (n3, E // 2 // 256, 256, 0)]
    emit_header(a, launches)
    d1 = gen_p1(a, n1)
    d2 = gen_p2(a, n2)
    d3 = gen_p3(a, n3)
    a.lines.append('.section .rodata,"a"')
    a.lines.append(".p2align 6")
    txt = a.text() + d1 + ".p2align 6\n" + d2 + ".p2align 6\n" + d3
    open(path, "w").write(txt)

if __name__ == "__main__":
    out = sys.argv[1] if len(sys.argv) > 1 else "standalone__molecular_angular_gemnet__graph.s"
    build(out)
    print("wrote", out, "P1_LDS", P1_LDS, "P2_LDS", P2_LDS, "WSEND", WSEND)
```
